```python
import torch

def _softmax(x, axis=-1):
    return torch.softmax(x, dim=axis)
def _gelu(x):
    return torch.nn.functional.gelu(x, approximate="tanh")
def _silu(x):
    return torch.nn.functional.silu(x)
def _sigmoid(x):
    return torch.sigmoid(x)
def _layernorm(x, axis=-1, eps=1e-5):
    m = x.mean(dim=axis, keepdim=True)
    v = x.var(dim=axis, keepdim=True, unbiased=False)
    return (x - m) / torch.sqrt(v + eps)
def _scatter_add(tgt, idx, src, axis=0):
    return tgt.clone().index_add_(axis, idx, src)
def _segment_sum(src, seg, n):
    out = torch.zeros((n,) + src.shape[1:], dtype=src.dtype)
    return out.index_add_(0, seg, src)
def _pad(x, pw):
    flat = tuple(v for pair in reversed(pw) for v in pair)
    return torch.nn.functional.pad(x, flat)

kernel_name = 'standalone__rmsnorm__sampling'

def setup_inputs():

    _w = (lambda a: (lambda t: t.to(torch.bfloat16) if t.is_floating_point() else t)(torch.as_tensor(a)))
    B, S, D = 1024, 16, 512
    return {
        "x": _w((lambda *s: torch.randn(*s, dtype=torch.bfloat16) * 0.05)(B, S, D)),
        "g": _w((lambda *s: torch.randn(*s, dtype=torch.bfloat16) * 0.05)(D) + 1.0),
    }

def reference(x, g):
    rms = torch.sqrt((x * x).mean(axis=-1, keepdims=True) + 1e-6)
    return x / rms * g
```

```python
import sys, argparse

HEADER = """; Kernarg layout for this problem (40 bytes, ptrs only, base s[0:1]):
"""
NAME = "standalone__rmsnorm__sampling_kernel"
NROWS = 16384
ROWB = 1024

def footer(nv, ns):
    acc = (nv + 3) // 4 * 4
    return f""".section .rodata,"a"
.p2align 6
.amdhsa_kernel {NAME}
  .amdhsa_next_free_vgpr {nv}
  .amdhsa_next_free_sgpr {ns}
  .amdhsa_accum_offset {acc}
  .amdhsa_group_segment_fixed_size 0
  .amdhsa_kernarg_size 40
  .amdhsa_user_sgpr_count 2
  .amdhsa_user_sgpr_kernarg_segment_ptr 1
  .amdhsa_system_sgpr_workgroup_id_x 1
  .amdhsa_float_denorm_mode_32 3
.end_amdhsa_kernel
"""

def gen_row16(wpb, gpw, lpol, spol, stamp=False, diag=0):
    rows_per_wg = wpb * gpw * 4
    nwg = NROWS // rows_per_wg
    L = []
    A = L.append
    A(HEADER + f"; @launch grid=({nwg},1,1) block=({wpb*64},1,1) lds=0")
    A('.amdgcn_target "amdgcn-amd-amdhsa--gfx950"')
    A(".text")
    A(f".globl {NAME}")
    A(".p2align 8")
    A(f".type {NAME},@function")
    A(f"{NAME}:")
    if stamp or diag: A("    s_memrealtime s[40:41]")
    A("    s_load_dwordx4 s[4:7], s[0:1], 0       ; x, g")
    if stamp: A("    s_load_dwordx2 s[38:39], s[0:1], 32")
    A("    s_load_dwordx2 s[12:13], s[0:1], 16    ; out")
    A("    v_and_b32 v1, 15, v0")
    A("    v_lshlrev_b32 v1, 4, v1")
    A("    v_lshrrev_b32 v2, 4, v0")
    if gpw == 1:
        A("    v_lshl_add_u32 v2, v2, 10, v1")
    else:
        A("    v_and_b32 v3, 3, v2")
        A("    v_lshrrev_b32 v2, 2, v2                ; wave")
        A(f"    v_mul_u32_u24 v2, {gpw*4096}, v2")
        A("    v_lshl_add_u32 v2, v3, 10, v2")
        A("    v_add_u32 v2, v2, v1")
    A(f"    s_mul_i32 s3, s2, {rows_per_wg*ROWB}")
    A(f"    s_cmp_ge_u32 s2, {nwg}")
    A("    s_cbranch_scc1 L_done")
    A(f"    s_mov_b32 s10, {NROWS*ROWB}")
    A("    s_mov_b32 s11, 0x00020000")
    A(f"    s_mov_b32 s14, {NROWS*ROWB}")
    A("    s_mov_b32 s15, 0x00020000")
    A("    v_add_u32 v2, s3, v2")
    A("    s_waitcnt lgkmcnt(0)")
    if stamp: A("    s_memrealtime s[42:43]")
    A("    s_mov_b32 s8, s4")
    A("    s_mov_b32 s9, s5")
    X0 = 4
    G0 = X0 + gpw * 16
    GF = G0 + 16
    T0 = GF + 32
    nld = 0
    for gi in range(gpw):
        for j in range(4):
            r = X0 + gi * 16 + j * 4
            so = "0"
            if gi > 0:
                so = f"s{16+gi}"
                if j == 0:
                    A(f"    s_movk_i32 s{16+gi}, {gi*4096}")
            A(f"    buffer_load_dwordx4 v[{r}:{r+3}], v2, s[8:11], {so} offen offset:{j*256}{lpol}")
        if gi == 0:
            for j in range(4):
                r = G0 + j * 4
                A(f"    global_load_dwordx4 v[{r}:{r+3}], v1, s[6:7] offset:{j*256}")
    A("    v_mov_b32 v3, 0x358637bd               ; eps 1e-6")
    A("    s_mov_b32 s3, 0x3b000000               ; 1/512")
    A("    s_mov_b32 s16, 0xffff0000")
    rem = 4 * (gpw - 1)
    A(f"    s_waitcnt vmcnt({rem})")
    if stamp or diag: A("    s_memrealtime s[44:45]")
    for k in range(16):
        A(f"    v_lshlrev_b32 v{GF+2*k}, 16, v{G0+k}")
        A(f"    v_and_b32 v{GF+2*k+1}, s16, v{G0+k}")
    nst = 0
    for gi in range(gpw):
        xb = X0 + gi * 16
        if gi > 0:
            A(f"    s_waitcnt vmcnt({4*(gpw-1-gi) + 4*gi})")
        acc = T0
        A(f"    v_mov_b32 v{acc}, 0")
        A(f"    v_mov_b32 v{acc+1}, 0")
        for k in range(0, 16):
            A(f"    v_dot2c_f32_bf16 v{acc+(k&1)}, v{xb+k}, v{xb+k}")
        A("    s_nop 2")
        A(f"    v_add_f32 v{acc}, v{acc}, v{acc+1}")
        for sh in (8, 4, 2, 1):
            A("    s_nop 1")
            A(f"    v_add_f32_dpp v{acc}, v{acc}, v{acc} row_ror:{sh} row_mask:0xf bank_mask:0xf")
        A(f"    v_fma_f32 v{acc}, v{acc}, s3, v3")
        A(f"    v_rsq_f32 v{acc}, v{acc}")
        A("    s_nop 0")
        t = T0 + 2
        for j in range(4):
            for k in range(4):
                r = xb + j * 4 + k
                tt = t + (k & 1) * 2 if False else t + k * 2
                A(f"    v_lshlrev_b32 v{tt}, 16, v{r}")
                A(f"    v_and_b32 v{tt+1}, s16, v{r}")
            for k in range(4):
                tt = t + k * 2
                A(f"    v_pk_mul_f32 v[{tt}:{tt+1}], v[{tt}:{tt+1}], v[{acc}:{acc+1}] op_sel_hi:[1,0]")
            for k in range(4):
                tt = t + k * 2
                gg = GF + (j * 4 + k) * 2
                A(f"    v_pk_mul_f32 v[{tt}:{tt+1}], v[{tt}:{tt+1}], v[{gg}:{gg+1}]")
            for k in range(4):
                r = xb + j * 4 + k
                tt = t + k * 2
                A(f"    v_cvt_pk_bf16_f32 v{r}, v{tt}, v{tt+1}")
            r = xb + j * 4
            so = "0" if gi == 0 else f"s{16+gi}"
            A(f"    buffer_store_dwordx4 v[{r}:{r+3}], v2, s[12:15], {so} offen offset:{j*256}{spol}")
    if stamp:
        A("    s_memrealtime s[46:47]")
        A("    s_waitcnt vmcnt(0)")
        A("    s_memrealtime s[48:49]")
        A("    s_waitcnt lgkmcnt(0)")
        A("    v_lshrrev_b32 v0, 6, v0")
        A(f"    s_mul_i32 s3, s2, {wpb}")
        A("    v_add_u32 v0, s3, v0")
        A("    v_mul_u32_u24 v0, 48, v0")
        A("    s_getreg_b32 s50, hwreg(HW_REG_XCC_ID)")
        A("    s_getreg_b32 s51, hwreg(HW_REG_HW_ID)")
        for k in range(12):
            A(f"    v_mov_b32 v{4+k}, s{40+k}")
        A("    s_mov_b64 exec, 1")
        A("    global_store_dwordx4 v0, v[4:7], s[38:39]")
        A("    global_store_dwordx4 v0, v[8:11], s[38:39] offset:16")
        A("    global_store_dwordx4 v0, v[12:15], s[38:39] offset:32")
    if diag:
        A("    s_waitcnt vmcnt(0)")
        A("    s_memrealtime s[46:47]")
        A("    s_waitcnt lgkmcnt(0)")
        if diag == 1:
            A("    s_add_u32 s40, s40, 3000")
        elif diag == 2:
            A("    s_sub_u32 s44, s44, s40")
            A("    s_lshl_b32 s44, s44, 4")
            A("    s_add_u32 s40, s40, 3000")
            A("    s_add_u32 s40, s40, s44")
        elif diag == 3:
            A("    s_sub_u32 s44, s46, s40")
            A("    s_lshl_b32 s44, s44, 4")
            A("    s_add_u32 s40, s40, 3000")
            A("    s_add_u32 s40, s40, s44")
        A("L_spin:")
        A("    s_sleep 1")
        A("    s_memrealtime s[42:43]")
        A("    s_waitcnt lgkmcnt(0)")
        A("    s_sub_u32 s42, s42, s40")
        A("    s_cmp_lt_i32 s42, 0")
        A("    s_cbranch_scc1 L_spin")
    A("L_done:")
    A("    s_endpgm")
    nv = T0 + 10
    A(footer(nv, 52 if (stamp or diag) else 16 + gpw + 1))
    return "\n".join(L)

if __name__ == "__main__":
    ap = argparse.ArgumentParser()
    ap.add_argument("--kind", default="row16")
    ap.add_argument("--wpb", type=int, default=4)
    ap.add_argument("--gpw", type=int, default=1)
    ap.add_argument("--lpol", default="")
    ap.add_argument("--spol", default="")
    ap.add_argument("--stamp", action="store_true")
    ap.add_argument("--diag", type=int, default=0)
    ap.add_argument("-o", default="-")
    a = ap.parse_args()
    lp = (" " + a.lpol.replace("+", " ")) if a.lpol else ""
    sp = (" " + a.spol.replace("+", " ")) if a.spol else ""
    s = {"row16": gen_row16}[a.kind](a.wpb, a.gpw, lp, sp, a.stamp, a.diag)
    if a.o == "-":
        print(s)
    else:
        open(a.o, "w").write(s)
```

```python
import sys, argparse
from gen import HEADER, NAME, NROWS, ROWB, footer

def stamp_tail(A, wpb):
    A("    s_memrealtime s[46:47]")
    A("    s_waitcnt vmcnt(0)")
    A("    s_memrealtime s[48:49]")
    A("    s_waitcnt lgkmcnt(0)")
    A("    v_lshrrev_b32 v0, 6, v0")
    A(f"    s_mul_i32 s3, s2, {wpb}")
    A("    v_add_u32 v0, s3, v0")
    A("    v_mul_u32_u24 v0, 48, v0")
    A("    s_getreg_b32 s50, hwreg(HW_REG_XCC_ID)")
    A("    s_getreg_b32 s51, hwreg(HW_REG_HW_ID)")
    for k in range(12):
        A(f"    v_mov_b32 v{4+k}, s{40+k}")
    A("    s_mov_b64 exec, 1")
    A("    global_store_dwordx4 v0, v[4:7], s[38:39]")
    A("    global_store_dwordx4 v0, v[8:11], s[38:39] offset:16")
    A("    global_store_dwordx4 v0, v[12:15], s[38:39] offset:32")

def gen(a):
    wpb, gpw = a.wpb, a.gpw
    lpol = (" " + a.lpol.replace("+", " ")) if a.lpol else ""
    spol = (" " + a.spol.replace("+", " ")) if a.spol else ""
    spol_last = (" " + a.spol_last.replace("+", " ")) if a.spol_last else spol
    stamp = a.stamp
    rows_per_wg = wpb * gpw * 4
    nwg = NROWS // rows_per_wg
    NW = nwg * wpb
    L = []
    A = L.append
    A(HEADER + f"; @launch grid=({nwg},1,1) block=({wpb*64},1,1) lds=0")
    A('.amdgcn_target "amdgcn-amd-amdhsa--gfx950"')
    A(".text")
    A(f".globl {NAME}")
    A(".p2align 8")
    A(f".type {NAME},@function")
    A(f"{NAME}:")
    if stamp: A("    s_memrealtime s[40:41]")
    A("    s_load_dwordx4 s[4:7], s[0:1], 0       ; x, g")
    A("    s_load_dwordx2 s[12:13], s[0:1], 16    ; out")
    if stamp: A("    s_load_dwordx2 s[38:39], s[0:1], 32")
    A("    v_and_b32 v1, 15, v0")
    A("    v_lshlrev_b32 v1, 4, v1")
    A("    v_lshrrev_b32 v2, 4, v0")
    if a.map == "stride" or gpw == 1:
        gstride = NW * 4096
        A("    v_lshl_add_u32 v2, v2, 10, v1")
        A(f"    s_mul_i32 s3, s2, {wpb*4096}")
    elif a.map == "wgcontig":
        gstride = wpb * 4096
        A("    v_lshl_add_u32 v2, v2, 10, v1")
        A(f"    s_mul_i32 s3, s2, {rows_per_wg*ROWB}")
    elif a.map == "xcd":
        gstride = NW // 8 * 4096
        A("    v_lshl_add_u32 v2, v2, 10, v1")
        A("    s_and_b32 s3, s2, 7")
        A("    s_lshl_b32 s3, s3, 21")
        A("    s_lshr_b32 s16, s2, 3")
        A(f"    s_mul_i32 s16, s16, {wpb*4096}")
        A("    s_add_u32 s3, s3, s16")
    else:
        gstride = 4096
        A("    v_and_b32 v3, 3, v2")
        A("    v_lshrrev_b32 v2, 2, v2                ; wave")
        A(f"    v_mul_u32_u24 v2, {gpw*4096}, v2")
        A("    v_lshl_add_u32 v2, v3, 10, v2")
        A("    v_add_u32 v2, v2, v1")
        A(f"    s_mul_i32 s3, s2, {rows_per_wg*ROWB}")
    A(f"    s_cmp_ge_u32 s2, {nwg}")
    A("    s_cbranch_scc1 L_done")
    A(f"    s_mov_b32 s10, {NROWS*ROWB}")
    A("    s_mov_b32 s11, 0x00020000")
    A(f"    s_mov_b32 s14, {NROWS*ROWB}")
    A("    s_mov_b32 s15, 0x00020000")
    A("    v_add_u32 v2, s3, v2")
    for gi in range(1, gpw):
        A(f"    s_mov_b32 s{16+gi}, {gi*gstride}")
    A("    s_waitcnt lgkmcnt(0)")
    if stamp: A("    s_memrealtime s[42:43]")
    A("    s_mov_b32 s8, s4")
    A("    s_mov_b32 s9, s5")
    X0 = 4
    G0 = X0 + gpw * 16
    GF = G0 + 16
    T0 = GF + 32
    TW = T0 + 10
    ops = []
    def so(gi): return "0" if gi == 0 else f"s{16+gi}"
    for gi in range(gpw):
        for j in range(4):
            r = X0 + gi * 16 + j * 4
            A(f"    buffer_load_dwordx4 v[{r}:{r+3}], v2, s[8:11], {so(gi)} offen offset:{j*256}{lpol}")
            ops.append(("x", gi))
        if gi == 0:
            for j in range(4):
                r = G0 + j * 4
                A(f"    global_load_dwordx4 v[{r}:{r+3}], v1, s[6:7] offset:{j*256}")
                ops.append(("g", 0))
    if a.tlbwarm:
        A("    s_mov_b64 exec, 1")
        ng = gpw if a.map in ("stride",) else 1
        for gi in range(ng):
            A(f"    buffer_load_dword v{TW}, v2, s[12:15], {so(gi)} offen")
            ops.append(("w", 0))
        A("    s_mov_b64 exec, -1")
    def wait_for(kind, gi):
        last = max(i for i, o in enumerate(ops) if o == (kind, gi))
        n = len(ops) - 1 - last
        A(f"    s_waitcnt vmcnt({n})")
    A("    v_mov_b32 v3, 0x358637bd               ; eps 1e-6")
    A("    s_mov_b32 s3, 0x3b000000               ; 1/512")
    A("    s_mov_b32 s16, 0xffff0000")
    wait_for("g", 0)
    for k in range(16):
        A(f"    v_lshlrev_b32 v{GF+2*k}, 16, v{G0+k}")
        A(f"    v_and_b32 v{GF+2*k+1}, s16, v{G0+k}")
    def store(gi, j, pol):
        r = X0 + gi * 16 + j * 4
        A(f"    buffer_store_dwordx4 v[{r}:{r+3}], v2, s[12:15], {so(gi)} offen offset:{j*256}{pol}")
        ops.append(("s", gi))
    pending = []
    for gi in range(gpw):
        xb = X0 + gi * 16
        if gi > 0:
            wait_for("x", gi)
        if gi == gpw - 1 and stamp: A("    s_memrealtime s[44:45]")
        if gi in a.wbat:
            A("    v_readfirstlane_b32 s30, v0")
            A(f"    s_lshr_b32 s31, s2, {a.wbsh}")
            A("    s_or_b32 s30, s30, s31")
            A("    s_cmp_lg_u32 s30, 0")
            A(f"    s_cbranch_scc1 L_nowb{gi}")
            A("    buffer_wbl2 sc1")
            A(f"L_nowb{gi}:")
        if gi >= a.delay:
            for (g2, j) in pending:
                store(g2, j, spol_last)
            pending = []
        acc = T0
        A(f"    v_mov_b32 v{acc}, 0")
        A(f"    v_mov_b32 v{acc+1}, 0")
        for k in range(0, 16):
            A(f"    v_dot2c_f32_bf16 v{acc+(k&1)}, v{xb+k}, v{xb+k}")
        A("    s_nop 2")
        A(f"    v_add_f32 v{acc}, v{acc}, v{acc+1}")
        for sh in (8, 4, 2, 1):
            A("    s_nop 1")
            A(f"    v_add_f32_dpp v{acc}, v{acc}, v{acc} row_ror:{sh} row_mask:0xf bank_mask:0xf")
        A(f"    v_fma_f32 v{acc}, v{acc}, s3, v3")
        A(f"    v_rsq_f32 v{acc}, v{acc}")
        A("    s_nop 0")
        t = T0 + 2
        for j in range(4):
            for k in range(4):
                r = xb + j * 4 + k
                tt = t + k * 2
                A(f"    v_lshlrev_b32 v{tt}, 16, v{r}")
                A(f"    v_and_b32 v{tt+1}, s16, v{r}")
            for k in range(4):
                tt = t + k * 2
                A(f"    v_pk_mul_f32 v[{tt}:{tt+1}], v[{tt}:{tt+1}], v[{acc}:{acc+1}] op_sel_hi:[1,0]")
            for k in range(4):
                tt = t + k * 2
                gg = GF + (j * 4 + k) * 2
                A(f"    v_pk_mul_f32 v[{tt}:{tt+1}], v[{tt}:{tt+1}], v[{gg}:{gg+1}]")
            for k in range(4):
                r = xb + j * 4 + k
                tt = t + k * 2
                A(f"    v_cvt_pk_bf16_f32 v{r}, v{tt}, v{tt+1}")
            if gi >= a.delay:
                store(gi, j, spol_last if gi >= a.lastfrom else spol)
            else:
                pending.append((gi, j))
    assert not pending
    if a.wbl2:
        A("    s_waitcnt vmcnt(0)")
        A("    buffer_wbl2 sc1")
    if stamp: stamp_tail(A, wpb)
    A("L_done:")
    A("    s_endpgm")
    nv = T0 + 11
    A(footer(nv, 52 if stamp else 32))
    return "\n".join(L)

if __name__ == "__main__":
    ap = argparse.ArgumentParser()
    ap.add_argument("--wpb", type=int, default=4)
    ap.add_argument("--gpw", type=int, default=4)
    ap.add_argument("--map", default="contig")
    ap.add_argument("--lpol", default="")
    ap.add_argument("--spol", default="")
    ap.add_argument("--spol_last", default="")
    ap.add_argument("--delay", type=int, default=0, help="stores of groups < delay are held until group `delay` has arrived")
    ap.add_argument("--lastfrom", type=int, default=99)
    ap.add_argument("--tlbwarm", action="store_true")
    ap.add_argument("--wbl2", action="store_true")
    ap.add_argument("--wbat", type=int, nargs="*", default=[])
    ap.add_argument("--wbsh", type=int, default=3)
    ap.add_argument("--stamp", action="store_true")
    ap.add_argument("-o", default="-")
    a = ap.parse_args()
    s = gen(a)
    if a.o == "-": print(s)
    else: open(a.o, "w").write(s)
```

```python
import sys, argparse
from gen import HEADER, NAME, NROWS, ROWB

def footer(nv, ns):
    acc = (nv + 3) // 4 * 4
    return f""".section .rodata,"a"
.p2align 6
.amdhsa_kernel {NAME}
  .amdhsa_next_free_vgpr {nv}
  .amdhsa_next_free_sgpr {ns}
  .amdhsa_accum_offset {acc}
  .amdhsa_group_segment_fixed_size 0
  .amdhsa_kernarg_size 40
  .amdhsa_user_sgpr_count 2
  .amdhsa_user_sgpr_kernarg_segment_ptr 1
  .amdhsa_system_sgpr_workgroup_id_x 1
  .amdhsa_float_denorm_mode_32 3
.end_amdhsa_kernel
"""

def gen(a):
    L = []
    A = L.append
    R, D, GS = 8, 4, 4
    lpol = " " + a.lpol.replace("+", " ") if a.lpol else ""
    spol = " " + a.spol.replace("+", " ") if a.spol else ""
    A(HEADER + "; @launch grid=(256,1,1) block=(512,1,1) lds=0")
    A('.amdgcn_target "amdgcn-amd-amdhsa--gfx950"')
    A(".text")
    if a.pad: A(f".fill {a.pad//4}, 4, 0xbf800000")
    A(f".globl {NAME}")
    A(".p2align 8")
    A(f".type {NAME},@function")
    A(f"{NAME}:")
    X0 = 8; G0 = X0 + R * 4; GF = G0 + 4; T0 = GF + 8
    P = 4
    A("    s_load_dwordx2 s[8:9], s[0:1], 0")
    A("    s_load_dwordx4 s[4:7], s[0:1], 8        ; g, out")
    A("    s_getpc_b64 s[20:21]")
    A(f"    v_lshlrev_b32 v3, {a.pfsh}, v0")
    A(f"    global_load_dword v{T0}, v3, s[20:21] offset:{a.pfoff}")
    A("    s_cmpk_ge_u32 s2, 0x100")
    A("    s_cbranch_scc1 L_done")
    A("    s_lshl_b32 s3, s2, 13")
    A("    v_lshl_add_u32 v2, v0, 4, s3")
    A("    s_lshl_b32 s10, 1, 24")
    if a.lit: A("    s_mov_b32 s11, 0x20000")
    else: A("    s_lshl_b32 s11, 1, 17                   ; 0x20000")
    for k in range(1, D):
        A(f"    s_lshl_b32 s{23+k}, {k}, 21")
    if a.gpos <= D: A("    v_bfe_u32 v1, v2, 0, 10                 ; lane*16")
    A("    s_waitcnt lgkmcnt(0)")
    ops = []
    so = lambda k: "0" if k == 0 else f"s{23+k}"
    def gload():
        A(f"    global_load_dwordx4 v[{G0}:{G0+3}], v1, s[4:5]")
        ops.append(("g", 0))
    def xload(k):
        r = X0 + k * 4
        A(f"    buffer_load_dwordx4 v[{r}:{r+3}], v2, s[8:11], {so(k)} offen{lpol}")
        ops.append(("x", k))
    def store(k):
        r = X0 + k * 4
        A(f"    buffer_store_dwordx4 v[{r}:{r+3}], v2, s[12:15], {so(k)} offen{spol}")
        ops.append(("s", k))
    def wait_for(kind, i):
        last = max(n for n, o in enumerate(ops) if o == (kind, i))
        A(f"    s_waitcnt vmcnt({len(ops) - 1 - last})")
    if a.gpos == 0: gload()
    for k in range(D):
        xload(k)
        if k + 1 == a.gpos: gload()
    for k in range(D, R):
        A(f"    s_lshl_b32 s{23+k}, {k}, 21")
    A("    s_mov_b64 s[12:13], s[6:7]")
    A("    s_mov_b32 s14, s10")
    A("    s_mov_b32 s15, s11")
    if a.gpos > D: A("    v_bfe_u32 v1, v2, 0, 10                 ; lane*16")
    A("    s_mov_b32 s3, 0x3b000000                ; 1/512")
    A("    s_mov_b32 s23, 0xffff0000")
    A("    v_mov_b32 v3, 0x358637bd                ; eps = 1e-6")
    pending = []
    gdone = False
    def gunpack():
        wait_for("g", 0)
        for c in range(4):
            A(f"    v_lshlrev_b32 v{GF+2*c}, 16, v{G0+c}")
            A(f"    v_and_b32 v{GF+2*c+1}, s23, v{G0+c}")
    midround = a.num in (2, 3)
    sqround = a.num in (3, 4)
    Q0 = T0 + 8 * GS
    if sqround: A("    s_mov_b32 s21, 0x3f803f80               ; bf16 (1.0, 1.0)")
    gfirst = a.gpos <= D and not midround
    for gi in range(R // GS):
        for r in range(GS):
            A(f"    v_mov_b32 v{P+r}, 0")
        for r in range(GS):
            k = gi * GS + r
            if a.early and r == 0:
                if gi == 0:
                    for k2 in range(GS):
                        wait_for("x", k2)
                        xload(k2 + D)
                    seen = GS - 1
                else:
                    wait_for("x", a.hold)
                    for k2 in pending: store(k2)
                    pending = []
                    seen = a.hold
            if not a.early or k > seen:
                wait_for("x", k)
                if k == 0 and a.gpos > D: gload()
                if k + D < R: xload(k + D)
                if k >= a.hold:
                    for k2 in pending: store(k2)
                    pending = []
            xb = X0 + k * 4
            if sqround:
                tb = T0 + 8 * r
                for c in range(4):
                    A(f"    v_lshlrev_b32 v{tb+2*c}, 16, v{xb+c}")
                    A(f"    v_and_b32 v{tb+2*c+1}, s23, v{xb+c}")
                for c in range(4):
                    A(f"    v_pk_mul_f32 v[{Q0+2*c}:{Q0+2*c+1}], v[{tb+2*c}:{tb+2*c+1}], v[{tb+2*c}:{tb+2*c+1}]")
                for c in range(4):
                    A(f"    v_cvt_pk_bf16_f32 v{Q0+2*c}, v{Q0+2*c}, v{Q0+2*c+1}")
                for c in range(4):
                    A(f"    v_dot2c_f32_bf16 v{P+r}, s21, v{Q0+2*c}")
            else:
                for c in range(4):
                    A(f"    v_dot2c_f32_bf16 v{P+r}, v{xb+c}, v{xb+c}")
        if not gdone and a.gpos <= D:
            gunpack(); gdone = True
        fill = []
        for r in range(GS):
            xb = X0 + (gi * GS + r) * 4
            tb = T0 + 8 * r
            if not sqround:
                for c in range(4):
                    fill.append(f"    v_lshlrev_b32 v{tb+2*c}, 16, v{xb+c}")
                    fill.append(f"    v_and_b32 v{tb+2*c+1}, s23, v{xb+c}")
            if gfirst or (gdone and not midround):
                for c in range(4):
                    fill.append(f"    v_pk_mul_f32 v[{tb+2*c}:{tb+2*c+1}], v[{tb+2*c}:{tb+2*c+1}], v[{GF+2*c}:{GF+2*c+1}]")
        gmul_done = gfirst or (gdone and not midround)
        def pad(n, hard=True):
            got = 0
            while got < n and fill:
                A(fill.pop(0)); got += 1
            if got < n and hard: A(f"    s_nop {n-got-1}")
        pad(3)
        A(f"    v_permlane32_swap_b32 v{P}, v{P+1}")
        A(f"    v_permlane32_swap_b32 v{P+2}, v{P+3}")
        pad(1)
        A(f"    v_add_f32 v{P}, v{P}, v{P+1}")
        A(f"    v_add_f32 v{P+2}, v{P+2}, v{P+3}")
        pad(2)
        A(f"    v_permlane16_swap_b32 v{P}, v{P+2}")
        pad(1)
        A(f"    v_add_f32 v{P}, v{P}, v{P+2}")
        for st in ("row_ror:8", "row_ror:4", "row_ror:2", "row_ror:1"):
            pad(2)
            A(f"    v_add_f32_dpp v{P}, v{P}, v{P} {st} row_mask:0xf bank_mask:0xf")
        if a.num == 0:
            A(f"    v_fma_f32 v{P}, v{P}, s3, v3")
            A(f"    v_rsq_f32 v{P}, v{P}")
        else:
            A(f"    v_cvt_pk_bf16_f32 v{P}, 0, v{P}")
            pad(1, False)
            A(f"    v_fma_f32 v{P}, v{P}, s3, v3")
            pad(1, False)
            A(f"    v_cvt_pk_bf16_f32 v{P}, 0, v{P}")
            pad(1, False)
            A(f"    v_sqrt_f32 v{P}, v{P}")
            pad(1)
            A(f"    v_cvt_pk_bf16_f32 v{P}, 0, v{P}")
            pad(1, False)
            A(f"    v_rcp_f32 v{P}, v{P}")
        pad(1)
        lanes = {0: 0, 2: 16, 1: 32, 3: 48}
        for r in range(GS):
            A(f"    v_readlane_b32 s{32+2*r}, v{P}, {lanes[r]}")
        pad(2)
        while fill: A(fill.pop(0))
        def scale(r):
            tb = T0 + 8 * r
            for c in range(4):
                A(f"    v_pk_mul_f32 v[{tb+2*c}:{tb+2*c+1}], v[{tb+2*c}:{tb+2*c+1}], s[{32+2*r}:{33+2*r}] op_sel_hi:[1,0]")
            if midround:
                xb = X0 + (gi * GS + r) * 4
                for c in range(4):
                    A(f"    v_cvt_pk_bf16_f32 v{xb+c}, v{tb+2*c}, v{tb+2*c+1}")
                for c in range(4):
                    A(f"    v_lshlrev_b32 v{tb+2*c}, 16, v{xb+c}")
                    A(f"    v_and_b32 v{tb+2*c+1}, s23, v{xb+c}")
        def finish(r):
            k = gi * GS + r
            xb = X0 + k * 4
            tb = T0 + 8 * r
            if not gmul_done:
                for c in range(4):
                    A(f"    v_pk_mul_f32 v[{tb+2*c}:{tb+2*c+1}], v[{tb+2*c}:{tb+2*c+1}], v[{GF+2*c}:{GF+2*c+1}]")
            for c in range(4):
                A(f"    v_cvt_pk_bf16_f32 v{xb+c}, v{tb+2*c}, v{tb+2*c+1}")
            if gi * GS + GS - 1 >= a.hold: store(k)
            else: pending.append(k)
        if not gdone:
            for r in range(GS): scale(r)
            gunpack(); gdone = True
            for r in range(GS): finish(r)
        else:
            for r in range(GS):
                scale(r); finish(r)
    assert not pending
    A("L_done:")
    A("    s_endpgm")
    A(f"    .fill ({NAME} + {20 + a.pfoff + (512 << a.pfsh)} - . + 3) / 4, 4, 0xbf800000 ; keeps the code-prefetch window inside .text")
    A(footer(T0 + 8 * GS + (8 if sqround else 0), 40))
    return "\n".join(L)

if __name__ == "__main__":
    ap = argparse.ArgumentParser()
    ap.add_argument("--lpol", default="nt")
    ap.add_argument("--spol", default="nt")
    ap.add_argument("--gpos", type=int, default=0)
    ap.add_argument("--hold", type=int, default=6)
    ap.add_argument("--num", type=int, default=1)
    ap.add_argument("--pad", type=int, default=0)
    ap.add_argument("--pfoff", type=int, default=108)
    ap.add_argument("--lit", action="store_true")
    ap.add_argument("--early", action="store_true")
    ap.add_argument("--pfsh", type=int, default=3)
    ap.add_argument("-o", default="-")
    a = ap.parse_args()
    s = gen(a)
    if a.o == "-": print(s)
    else: open(a.o, "w").write(s)
```

```python
import sys, argparse
from gen import HEADER, NAME
from gen7 import footer

def gen(a):
    L = []
    A = L.append
    W, R, GS = a.w, 64 // a.w, a.gs
    pol = lambda p: " " + p.replace("+", " ") if p else ""
    lpol, spol = pol(a.lpol), pol(a.spol)
    A(HEADER + f"; @launch grid=(256,1,1) block=({W*64},1,1) lds=0")
    A('.amdgcn_target "amdgcn-amd-amdhsa--gfx950"')
    A(".text")
    if a.pad: A(f".fill {a.pad//4}, 4, 0xbf800000")
    A(f".globl {NAME}")
    A(".p2align 8")
    A(f".type {NAME},@function")
    A(f"{NAME}:")
    X0 = 8; G0 = X0 + R * 4; GF = G0 + 4; T0 = GF + 8; Q0 = T0 + 8 * GS
    P = 4
    C = a.c
    cb = C.bit_length() - 1
    wb = W.bit_length() - 1
    blk = 10 + cb + wb
    step = blk + 8
    def addr(k): return (k // C, (k % C) * 1024)
    pfsh = {4: 4, 8: 3, 16: 2}[W]
    if a.diag: A("    s_memrealtime s[60:61]")
    A("    s_load_dwordx2 s[8:9], s[0:1], 0")
    A("    s_load_dwordx4 s[4:7], s[0:1], 8        ; g, out")
    A("    s_getpc_b64 s[20:21]")
    A(f"    v_lshlrev_b32 v3, {pfsh}, v0")
    A(f"    global_load_dword v{T0}, v3, s[20:21] offset:108")
    A("    s_cmpk_ge_u32 s2, 0x100")
    A("    s_cbranch_scc1 L_done")
    if a.iod:
        A("    s_lshr_b32 s3, s2, 3")
        A("    s_lshl_b32 s3, s3, 2")
        A("    s_and_b32 s16, s2, 3")
        A("    s_add_u32 s3, s3, s16")
        A("    s_lshl_b32 s3, s3, 14")
        A("    s_bfe_u32 s16, s2, 0x10002")
        A("    s_lshl_b32 s16, s16, 13")
        A("    s_add_u32 s3, s3, s16")
    else:
        A(f"    s_lshl_b32 s3, s2, {blk}")
    if C == 1:
        A("    v_lshl_add_u32 v2, v0, 4, s3")
        A("    v_bfe_u32 v1, v2, 0, 10                 ; lane*16")
    else:
        A("    v_and_b32 v1, 63, v0")
        A("    v_lshlrev_b32 v1, 4, v1                 ; lane*16")
        A("    v_lshrrev_b32 v2, 6, v0")
        A(f"    v_lshlrev_b32 v2, {10+cb}, v2")
        A("    v_add3_u32 v2, v2, v1, s3")
    VF = Q0 + 8
    if a.iod: A(f"    v_xor_b32 v{VF}, 0x2000, v2")
    flips = [int(x) for x in a.iod] if a.iod else [0] * R
    va = lambda k: f"v{VF}" if flips[k] else "v2"
    A("    s_lshl_b32 s10, 1, 24")
    A("    s_lshl_b32 s11, 1, 17                   ; 0x20000")
    made = set([0])
    def mk(k):
        j = addr(k)[0]
        if j not in made:
            made.add(j); A(f"    s_lshl_b32 s{39+j}, {j}, {step}")
    D = a.d
    for k in range(D): mk(k)
    if a.prio0: A(f"    s_setprio {a.prio0}")
    A("    s_waitcnt lgkmcnt(0)")
    if a.diag: A("    s_memrealtime s[62:63]")
    ops = []
    def so(k):
        j, o = addr(k)
        return ("0" if j == 0 else f"s{39+j}") + " offen" + (f" offset:{o}" if o else "")
    def gload():
        A(f"    global_load_dwordx4 v[{G0}:{G0+3}], v1, s[4:5]"); ops.append(("g", 0))
    def xload(k):
        r = X0 + k * 4
        A(f"    buffer_load_dwordx4 v[{r}:{r+3}], {va(k)}, s[8:11], {so(k)}{lpol}"); ops.append(("x", k))
    def store(k):
        r = X0 + k * 4
        A(f"    buffer_store_dwordx4 v[{r}:{r+3}], {va(k)}, s[12:15], {so(k)}{spol if k < a.sw else pol(a.spol2)}"); ops.append(("s", k))
    waited = [-1]
    def wait_for(kind, i):
        last = max(n for n, o in enumerate(ops) if o == (kind, i))
        if last <= waited[0]: return
        waited[0] = last
        A(f"    s_waitcnt vmcnt({len(ops) - 1 - last})")
    if a.gpos == 0: gload()
    for k in range(D):
        xload(k)
        if k + 1 == a.gpos: gload()
    for k in range(D, R): mk(k)
    A("    s_mov_b64 s[12:13], s[6:7]")
    A("    s_mov_b32 s14, s10")
    A("    s_mov_b32 s15, s11")
    A("    s_mov_b32 s3, 0x3b000000                ; 1/512")
    A("    s_mov_b32 s23, 0xffff0000")
    A("    v_mov_b32 v3, 0x358637bd                ; eps = 1e-6")
    A("    s_mov_b32 s21, 0x3f803f80               ; bf16 (1.0, 1.0)")
    gdone = [False]
    midround = a.num == 3
    plain = a.num == 0
    def compute(gi, eager):
        for r in range(GS): A(f"    v_mov_b32 v{P+r}, 0")
        for r in range(GS):
            k = gi * GS + r
            wait_for("x", k)
            xb = X0 + k * 4; tb = T0 + 8 * r
            if plain:
                for c in range(4): A(f"    v_dot2c_f32_bf16 v{P+r}, v{xb+c}, v{xb+c}")
                continue
            for c in range(4):
                A(f"    v_lshlrev_b32 v{tb+2*c}, 16, v{xb+c}")
                A(f"    v_and_b32 v{tb+2*c+1}, s23, v{xb+c}")
            for c in range(4): A(f"    v_pk_mul_f32 v[{Q0+2*c}:{Q0+2*c+1}], v[{tb+2*c}:{tb+2*c+1}], v[{tb+2*c}:{tb+2*c+1}]")
            for c in range(4): A(f"    v_cvt_pk_bf16_f32 v{Q0+2*c}, v{Q0+2*c}, v{Q0+2*c+1}")
            for c in range(4): A(f"    v_dot2c_f32_bf16 v{P+r}, s21, v{Q0+2*c}")
        if not gdone[0]:
            wait_for("g", 0)
            for c in range(4):
                A(f"    v_lshlrev_b32 v{GF+2*c}, 16, v{G0+c}")
                A(f"    v_and_b32 v{GF+2*c+1}, s23, v{G0+c}")
            gdone[0] = True
        fill = []
        for r in range(GS):
            tb = T0 + 8 * r; xb = X0 + (gi * GS + r) * 4
            if plain:
                for c in range(4):
                    fill.append(f"    v_lshlrev_b32 v{tb+2*c}, 16, v{xb+c}")
                    fill.append(f"    v_and_b32 v{tb+2*c+1}, s23, v{xb+c}")
            if not midround:
                for c in range(4):
                    fill.append(f"    v_pk_mul_f32 v[{tb+2*c}:{tb+2*c+1}], v[{tb+2*c}:{tb+2*c+1}], v[{GF+2*c}:{GF+2*c+1}]")
        def pad(n, hard=True):
            got = 0
            while got < n and fill:
                A(fill.pop(0)); got += 1
            if got < n and hard: A(f"    s_nop {n-got-1}")
        pad(3)
        if GS == 4:
            A(f"    v_permlane32_swap_b32 v{P}, v{P+1}")
            A(f"    v_permlane32_swap_b32 v{P+2}, v{P+3}")
            pad(1)
            A(f"    v_add_f32 v{P}, v{P}, v{P+1}")
            A(f"    v_add_f32 v{P+2}, v{P+2}, v{P+3}")
            pad(2)
            A(f"    v_permlane16_swap_b32 v{P}, v{P+2}")
            pad(1)
            A(f"    v_add_f32 v{P}, v{P}, v{P+2}")
            lanes = {0: 0, 2: 16, 1: 32, 3: 48}
        else:
            A(f"    v_permlane32_swap_b32 v{P}, v{P+1}")
            pad(1)
            A(f"    v_add_f32 v{P}, v{P}, v{P+1}")
            lanes = {0: 16, 1: 48}
        for st in ("row_ror:8", "row_ror:4", "row_ror:2", "row_ror:1"):
            pad(2)
            A(f"    v_add_f32_dpp v{P}, v{P}, v{P} {st} row_mask:0xf bank_mask:0xf")
        if GS == 2:
            pad(2)
            A(f"    v_add_f32_dpp v{P}, v{P}, v{P} row_bcast:15 row_mask:0xa bank_mask:0xf")
        if plain:
            A(f"    v_fma_f32 v{P}, v{P}, s3, v3")
            A(f"    v_rsq_f32 v{P}, v{P}")
        else:
            A(f"    v_cvt_pk_bf16_f32 v{P}, 0, v{P}")
            pad(1, False)
            A(f"    v_fma_f32 v{P}, v{P}, s3, v3")
            pad(1, False)
            A(f"    v_cvt_pk_bf16_f32 v{P}, 0, v{P}")
            pad(1, False)
            A(f"    v_sqrt_f32 v{P}, v{P}")
            pad(1)
            A(f"    v_cvt_pk_bf16_f32 v{P}, 0, v{P}           ; rms")
            pad(1, False)
            A(f"    v_rcp_f32 v{P}, v{P}")
        pad(1)
        for r in range(GS): A(f"    v_readlane_b32 s{24+2*r}, v{P}, {lanes[r]}")
        pad(2)
        while fill: A(fill.pop(0))
        for r in range(GS):
            k = gi * GS + r; xb = X0 + k * 4; tb = T0 + 8 * r
            for c in range(4):
                A(f"    v_pk_mul_f32 v[{tb+2*c}:{tb+2*c+1}], v[{tb+2*c}:{tb+2*c+1}], s[{24+2*r}:{25+2*r}] op_sel_hi:[1,0]")
            if midround:
                for c in range(4): A(f"    v_cvt_pk_bf16_f32 v{xb+c}, v{tb+2*c}, v{tb+2*c+1}")
                for c in range(4):
                    A(f"    v_lshlrev_b32 v{tb+2*c}, 16, v{xb+c}")
                    A(f"    v_and_b32 v{tb+2*c+1}, s23, v{xb+c}")
                for c in range(4): A(f"    v_pk_mul_f32 v[{tb+2*c}:{tb+2*c+1}], v[{tb+2*c}:{tb+2*c+1}], v[{GF+2*c}:{GF+2*c+1}]")
            for c in range(4): A(f"    v_cvt_pk_bf16_f32 v{xb+c}, v{tb+2*c}, v{tb+2*c+1}")
            if eager: store(k)
    for t in a.script.split():
        n = int(t[1:]) if len(t) > 1 else 0
        if t[0] == "w": wait_for("x", n)
        elif t[0] == "l": xload(n)
        elif t[0] == "s": store(n)
        elif t[0] == "c": compute(n, False)
        elif t[0] == "C": compute(n, True)
        elif t[0] == "b": A("    s_barrier")
        elif t[0] == "p": A(f"    s_setprio {n}")
        elif t[0] == "t": A(f"    s_memrealtime s[{60+2*n}:{61+2*n}]")
    assert sorted(k for (t, k) in ops if t == "x") == list(range(R))
    assert sorted(k for (t, k) in ops if t == "s") == list(range(R))
    if a.diag:
        hi, lo, sg = a.diag.split(",")
        hi, lo = int(hi), int(lo)
        A("    s_waitcnt vmcnt(0)")
        A("    s_memrealtime s[78:79]")
        A("    s_waitcnt lgkmcnt(0)")
        A(f"    s_sub_u32 s80, s{60+2*hi}, s{60+2*lo}")
        if sg == "-":
            A("    s_sub_u32 s80, 400, s80")
            A("    s_max_i32 s80, s80, 0")
        if sg == "0": A("    s_mov_b32 s80, 0")
        A("    s_lshl_b32 s80, s80, 4")
        A("    s_add_u32 s80, s80, 3000")
        A("    s_add_u32 s80, s80, s60")
        A("L_spin:")
        A("    s_sleep 1")
        A("    s_memrealtime s[82:83]")
        A("    s_waitcnt lgkmcnt(0)")
        A("    s_sub_u32 s82, s82, s80")
        A("    s_cmp_lt_i32 s82, 0")
        A("    s_cbranch_scc1 L_spin")
    A("L_done:")
    A("    s_endpgm")
    A(f"    .fill ({NAME} + {128 + 4096} - . + 3) / 4, 4, 0xbf800000 ; keeps the code-prefetch window inside .text")
    A(footer(Q0 + 9, 88 if a.diag else 56))
    return "\n".join(L)

if __name__ == "__main__":
    ap = argparse.ArgumentParser()
    ap.add_argument("--w", type=int, default=8)
    ap.add_argument("--gs", type=int, default=4)
    ap.add_argument("--c", type=int, default=1)
    ap.add_argument("--d", type=int, default=4)
    ap.add_argument("--lpol", default="nt")
    ap.add_argument("--spol", default="nt")
    ap.add_argument("--gpos", type=int, default=0)
    ap.add_argument("--num", type=int, default=4)
    ap.add_argument("--pad", type=int, default=1024)
    ap.add_argument("--prio0", type=int, default=0)
    ap.add_argument("--diag", default="")
    ap.add_argument("--iod", default="")
    ap.add_argument("--sw", type=int, default=99)
    ap.add_argument("--spol2", default="")
    ap.add_argument("--script", default="w0 l4 w1 l5 w2 l6 w3 l7 c0 w6 s0 s1 s2 s3 C1")
    ap.add_argument("-o", default="-")
    a = ap.parse_args()
    s = gen(a)
    if a.o == "-": print(s)
    else: open(a.o, "w").write(s)
```

```python
import sys, argparse
from gen import HEADER, NAME

DOC = """;
;
;
;
;
; Registers
;   v40-v43 g (bf16)   v44-v51 g (f32)   v52-v83 four rows as f32   v84-v91 squares"""

def gen(a):
    L = []
    A = L.append
    A(HEADER + "; @launch grid=(256,1,1) block=(512,1,1) lds=0")
    A(DOC)
    A('.amdgcn_target "amdgcn-amd-amdhsa--gfx950"')
    A(".text")
    if a.align: A(".p2align 13")
    A(f".globl {NAME}")
    A(".p2align 8")
    A(f".type {NAME},@function")
    A(f"{NAME}:")
    X0, G0, GF, T0, Q0, P = 8, 40, 44, 52, 84, 4
    so = lambda k: "0" if k == 0 else f"s{15+k}"
    A("    s_load_dwordx2 s[8:9], s[0:1], 0            ; x")
    A("    s_load_dwordx4 s[4:7], s[0:1], 8            ; g, out")
    if a.pf == 1:
        A("    s_getpc_b64 s[34:35]")
        A("    v_lshlrev_b32 v3, 3, v0")
        A(f"    global_load_dword v{T0}, v3, s[34:35] offset:108")
    elif a.pf == 2:
        A("    s_getpc_b64 s[34:35]")
        A("    v_mov_b32 v1, 0")
        A("    v_lshl_add_u64 v[4:5], v[0:1], 3, s[34:35]")
        A(f"    global_load_dword v{T0}, v[4:5], off offset:108")
    A("    s_cmpk_ge_u32 s2, 0x100")
    A("    s_cbranch_scc1 L_done")
    if a.map:
        toks = a.map.split()
        assert sorted(toks) == sorted(["w0","w1","w2","x0","x1","x2","c0","c1","c2","c3","c4","k0","k1","k2"])
        pos = {t: 10 + i for i, t in enumerate(toks)}
        A("    s_mov_b32 s3, 0")
        for t in ["x0","x1","x2","c0","c1","c2","c3","c4"]:
            src = int(t[1]) + (0 if t[0] == "x" else 3)
            A(f"    s_bfe_u32 s25, s2, {(1 << 16) | src}")
            A(f"    s_lshl_b32 s25, s25, {pos[t]}")
            A("    s_or_b32 s3, s3, s25")
        A("    v_and_b32 v2, 63, v0")
        A("    v_lshl_add_u32 v2, v2, 4, s3")
        for i in range(3):
            A(f"    v_bfe_u32 v6, v0, {6+i}, 1")
            A(f"    v_lshl_add_u32 v2, v6, {pos['w%d' % i]}, v2")
        koff = lambda k: sum(((k >> i) & 1) << pos["k%d" % i] for i in range(3))
    else:
        koff = lambda k: k << 21
        A("    s_lshl_b32 s3, s2, 13")
        A("    v_lshl_add_u32 v2, v0, 4, s3")
    if a.gpos == 0: A("    v_bfe_u32 v1, v2, 0, 10                     ; lane*16")
    A("    s_lshl_b32 s10, 1, 24")
    A("    s_lshl_b32 s11, 1, 17                       ; 0x20000")
    for k in range(1, 4): A(f"    s_mov_b32 {so(k)}, {koff(k)}" if a.map else f"    s_lshl_b32 {so(k)}, {k}, 21")
    A("    s_waitcnt lgkmcnt(0)")
    ops = []
    def gload():
        A(f"    global_load_dwordx4 v[{G0}:{G0+3}], v1, s[4:5]"); ops.append(("g", 0))
    def xload(k):
        A(f"    buffer_load_dwordx4 v[{X0+4*k}:{X0+4*k+3}], v2, s[8:11], {so(k)} offen nt"); ops.append(("x", k))
    def store(k):
        A(f"    buffer_store_dwordx4 v[{X0+4*k}:{X0+4*k+3}], v2, s[12:15], {so(k)} offen nt"); ops.append(("s", k))
    waited = [-1]
    def wait_for(kind, i):
        last = max(n for n, o in enumerate(ops) if o == (kind, i))
        if last <= waited[0]: return
        waited[0] = last
        A(f"    s_waitcnt vmcnt({len(ops) - 1 - last})                          ; " + (f"row {i} landed" if kind == "x" else "g landed"))
    if a.gpos == 0: gload()
    for k in range(4): xload(k)
    if a.gpos == 4:
        A("    v_bfe_u32 v1, v2, 0, 10                     ; lane*16")
        gload()
    for k in range(4, 8): A(f"    s_mov_b32 {so(k)}, {koff(k)}" if a.map else f"    s_lshl_b32 {so(k)}, {k}, 21")
    A("    s_mov_b64 s[12:13], s[6:7]")
    A("    s_mov_b32 s14, s10")
    A("    s_mov_b32 s15, s11")
    A("    s_mov_b32 s3, 0x3b000000                    ; 1/512")
    A("    s_mov_b32 s23, 0xffff0000")
    A("    s_mov_b32 s24, 0x3f803f80                   ; bf16 (1.0, 1.0)")
    A("    v_mov_b32 v3, 0x358637bd                    ; eps = 1e-6")
    gdone = [False]
    gmul = set()
    def gunpack():
        if gdone[0]: return
        wait_for("g", 0)
        for c in range(4):
            A(f"    v_lshlrev_b32 v{GF+2*c}, 16, v{G0+c}")
            A(f"    v_and_b32 v{GF+2*c+1}, s23, v{G0+c}")
        gdone[0] = True
    def gm(k):
        tb = T0 + 8 * (k % 4)
        return [f"    v_pk_mul_f32 v[{tb+2*c}:{tb+2*c+1}], v[{tb+2*c}:{tb+2*c+1}], v[{GF+2*c}:{GF+2*c+1}]" for c in range(4)]
    def phase1(k, withg):
        r = k % 4; xb = X0 + 4 * k; tb = T0 + 8 * r
        A(f"    v_mov_b32 v{P+r}, 0")
        wait_for("x", k)
        for c in range(4):
            A(f"    v_lshlrev_b32 v{tb+2*c}, 16, v{xb+c}")
            A(f"    v_and_b32 v{tb+2*c+1}, s23, v{xb+c}")
        for c in range(4): A(f"    v_pk_mul_f32 v[{Q0+2*c}:{Q0+2*c+1}], v[{tb+2*c}:{tb+2*c+1}], v[{tb+2*c}:{tb+2*c+1}]")
        for c in range(4): A(f"    v_cvt_pk_bf16_f32 v{Q0+2*c}, v{Q0+2*c}, v{Q0+2*c+1}")
        for c in range(4): A(f"    v_dot2c_f32_bf16 v{P+r}, s24, v{Q0+2*c}")
        if withg:
            gunpack()
            for l in gm(k): A(l)
            gmul.add(k)
    def reduce(rows, eager):
        gunpack()
        n = len(rows); p = [P + k % 4 for k in rows]
        fill = []
        for k in rows:
            if k not in gmul: fill += gm(k)
        def pad(m):
            got = 0
            while got < m and fill:
                A(fill.pop(0)); got += 1
            if got < m: A(f"    s_nop {m-got-1}")
        pad(3)
        v = p[0]
        if n == 4:
            A(f"    v_permlane32_swap_b32 v{p[0]}, v{p[1]}")
            A(f"    v_permlane32_swap_b32 v{p[2]}, v{p[3]}")
            A(f"    v_add_f32 v{p[0]}, v{p[0]}, v{p[1]}")
            A(f"    v_add_f32 v{p[2]}, v{p[2]}, v{p[3]}")
            pad(2)
            A(f"    v_permlane16_swap_b32 v{p[0]}, v{p[2]}")
            A(f"    v_add_f32 v{p[0]}, v{p[0]}, v{p[2]}")
            lanes = [0, 32, 16, 48]
            pad(2)
        elif n == 2:
            A(f"    v_permlane32_swap_b32 v{p[0]}, v{p[1]}")
            A(f"    v_add_f32 v{p[0]}, v{p[0]}, v{p[1]}")
            lanes = [16, 48]
            pad(2)
        else:
            lanes = [63]
        steps = ["row_ror:8 row_mask:0xf", "row_ror:4 row_mask:0xf", "row_ror:2 row_mask:0xf", "row_ror:1 row_mask:0xf"]
        if n <= 2: steps.append("row_bcast:15 row_mask:0xa")
        if n == 1: steps.append("row_bcast:31 row_mask:0xc")
        for i, st in enumerate(steps):
            if i: pad(2)
            A(f"    v_add_f32_dpp v{v}, v{v}, v{v} {st} bank_mask:0xf")
        A(f"    v_cvt_pk_bf16_f32 v{v}, 0, v{v}")
        A(f"    v_fma_f32 v{v}, v{v}, s3, v3")
        A(f"    v_cvt_pk_bf16_f32 v{v}, 0, v{v}")
        A(f"    v_sqrt_f32 v{v}, v{v}")
        pad(1)
        A(f"    v_cvt_pk_bf16_f32 v{v}, 0, v{v}                 ; rms")
        A(f"    v_rcp_f32 v{v}, v{v}")
        pad(1)
        for i, k in enumerate(rows): A(f"    v_readlane_b32 s{26+2*i}, v{v}, {lanes[i]}")
        if n < 3 or fill: pad(max(0, 3 - n)) if n < 3 else None
        while fill: A(fill.pop(0))
        for i, k in enumerate(rows):
            xb = X0 + 4 * k; tb = T0 + 8 * (k % 4)
            for c in range(4):
                A(f"    v_pk_mul_f32 v[{tb+2*c}:{tb+2*c+1}], v[{tb+2*c}:{tb+2*c+1}], s[{26+2*i}:{27+2*i}] op_sel_hi:[1,0]")
            for c in range(4): A(f"    v_cvt_pk_bf16_f32 v{xb+c}, v{tb+2*c}, v{tb+2*c+1}")
            if eager: store(k)
    for t in a.script.split():
        arg = t[1:]
        if t[0] == "w": wait_for("x", int(arg))
        elif t[0] == "l": xload(int(arg))
        elif t[0] == "s":
            for ch in arg: store(int(ch))
        elif t[0] == "a":
            for ch in arg: phase1(int(ch), False)
        elif t[0] == "A":
            for ch in arg: phase1(int(ch), True)
        elif t[0] == "r": reduce([int(c) for c in arg], False)
        elif t[0] == "R": reduce([int(c) for c in arg], True)
        elif t[0] == "p": A(f"    s_setprio {arg}")
    assert sorted(k for (t, k) in ops if t == "x") == list(range(8))
    assert sorted(k for (t, k) in ops if t == "s") == list(range(8))
    A("L_done:")
    A("    s_endpgm")
    if a.pf: A(f"    .fill ({NAME} + {128 + 4096} - . + 3) / 4, 4, 0xbf810000 ; never executed: keeps the prefetch window inside .text")
    A(f""".section .rodata,"a"
.p2align 6
.amdhsa_kernel {NAME}
  .amdhsa_next_free_vgpr 92
  .amdhsa_next_free_sgpr 36
  .amdhsa_accum_offset 92
  .amdhsa_group_segment_fixed_size 0
  .amdhsa_kernarg_size 40
  .amdhsa_user_sgpr_count 2
  .amdhsa_user_sgpr_kernarg_segment_ptr 1
  .amdhsa_system_sgpr_workgroup_id_x 1
  .amdhsa_float_denorm_mode_32 3
.end_amdhsa_kernel
""")
    return "\n".join(L)

if __name__ == "__main__":
    ap = argparse.ArgumentParser()
    ap.add_argument("--align", type=int, default=1)
    ap.add_argument("--pf", type=int, default=1)
    ap.add_argument("--gpos", type=int, default=0)
    ap.add_argument("--map", default="")
    ap.add_argument("--script", default="w0 l4 w1 l5 w2 l6 w3 l7 a0123 r0123 w6 s0123 a4567 R4567")
    ap.add_argument("-o", default="-")
    a = ap.parse_args()
    s = gen(a)
    if a.o == "-": print(s)
    else: open(a.o, "w").write(s)
```

```python
import sys, argparse
from gen import HEADER, NAME

DOC = """;
;
;
;
;
; Registers
;   v40-v43 g (bf16)   v44-v51 g (f32)   v52-v83 four rows as f32   v84-v91 squares"""

def gen(a):
    L = []
    A = L.append
    A(HEADER + "; @launch grid=(256,1,1) block=(512,1,1) lds=0")
    A(DOC)
    A('.amdgcn_target "amdgcn-amd-amdhsa--gfx950"')
    A(".text")
    if a.align: A(".p2align 13                                     ; code and kernel descriptor in different 8 KiB interleave units")
    A(f".globl {NAME}")
    A(".p2align 8")
    A(f".type {NAME},@function")
    A(f"{NAME}:")
    X0, G0, GF, T0, Q0, P = 8, 40, 44, 52, 84, 4
    so = lambda k: "0" if k == 0 else ("s36" if k == 8 else f"s{15+k}")
    xr = lambda k: 92 if k == 8 else X0 + 4 * k
    A("    s_load_dwordx2 s[8:9], s[0:1], 0            ; x")
    A("    s_load_dwordx4 s[4:7], s[0:1], 8            ; g, out")
    if a.pf == 1:
        A("    s_getpc_b64 s[34:35]")
        A("    v_lshlrev_b32 v3, 3, v0")
        A(f"    global_load_dword v{T0}, v3, s[34:35] offset:108")
    elif a.pf == 2:
        A("    s_getpc_b64 s[34:35]")
        A("    v_mov_b32 v1, 0")
        A("    v_lshl_add_u64 v[4:5], v[0:1], 3, s[34:35]")
        A(f"    global_load_dword v{T0}, v[4:5], off offset:108")
    A("    s_cmpk_ge_u32 s2, 0x100")
    A("    s_cbranch_scc1 L_done")
    if a.map:
        toks = a.map.split()
        assert sorted(toks) == sorted(["w0","w1","w2","x0","x1","x2","c0","c1","c2","c3","c4","k0","k1","k2"])
        pos = {t: 10 + i for i, t in enumerate(toks)}
        A("    s_mov_b32 s3, 0")
        for t in ["x0","x1","x2","c0","c1","c2","c3","c4"]:
            src = int(t[1]) + (0 if t[0] == "x" else 3)
            A(f"    s_bfe_u32 s25, s2, {(1 << 16) | src}")
            A(f"    s_lshl_b32 s25, s25, {pos[t]}")
            A("    s_or_b32 s3, s3, s25")
        A("    v_and_b32 v2, 63, v0")
        A("    v_lshl_add_u32 v2, v2, 4, s3")
        for i in range(3):
            A(f"    v_bfe_u32 v6, v0, {6+i}, 1")
            A(f"    v_lshl_add_u32 v2, v6, {pos['w%d' % i]}, v2")
        koff = lambda k: sum(((k >> i) & 1) << pos["k%d" % i] for i in range(3))
    else:
        koff = lambda k: k << 21
        A("    s_lshl_b32 s3, s2, 13")
        A("    v_lshl_add_u32 v2, v0, 4, s3")
    if a.gpos == 0: A("    v_bfe_u32 v1, v2, 0, 10                     ; lane*16")
    A("    s_lshl_b32 s10, 1, 24")
    A("    s_lshl_b32 s11, 1, 17                       ; 0x20000")
    for k in range(1, 4): A(f"    s_mov_b32 {so(k)}, {koff(k)}" if a.map else f"    s_lshl_b32 {so(k)}, {k}, 21")
    A("    s_waitcnt lgkmcnt(0)")
    ops = []
    def gload():
        A(f"    global_load_dwordx4 v[{G0}:{G0+3}], v1, s[4:5]"); ops.append(("g", 0))
    def xload(k):
        A(f"    buffer_load_dwordx4 v[{xr(k)}:{xr(k)+3}], v2, s[8:11], {so(k)} offen nt"); ops.append(("x", k))
    def store(k):
        A(f"    buffer_store_dwordx4 v[{xr(k)}:{xr(k)+3}], v2, s[12:15], {so(k)} offen nt"); ops.append(("s", k))
    waited = [-1]
    def wait_for(kind, i):
        last = max(n for n, o in enumerate(ops) if o == (kind, i))
        if last <= waited[0]: return
        waited[0] = last
        A(f"    s_waitcnt vmcnt({len(ops) - 1 - last})                          ; " + (f"row {i} landed" if kind == "x" else "g landed"))
    setup = [(f"    s_mov_b32 {so(k)}, {koff(k)}" if a.map else f"    s_lshl_b32 {so(k)}, {k}, 21") for k in range(4, 8)]
    setup += ["    s_mov_b64 s[12:13], s[6:7]", "    s_mov_b32 s14, s10", "    s_mov_b32 s15, s11",
              "    s_mov_b32 s3, 0x3b000000                    ; 1/512", "    s_mov_b32 s23, 0xffff0000",
              "    s_mov_b32 s24, 0x3f803f80                   ; bf16 (1.0, 1.0)"]
    if a.gpos == 0: gload()
    for k in range(a.d):
        xload(k)
        if k < a.d - 1:
            for _ in range(a.gap):
                A(setup.pop(0) if setup else "    s_nop 0")
        if k == 3 and a.gpos == 4:
            A("    v_bfe_u32 v1, v2, 0, 10                     ; lane*16")
            gload()
    for l in setup: A(l)
    A("    v_mov_b32 v3, 0x358637bd                    ; eps = 1e-6")
    if a.shift:
        n = abs(a.shift); giver = 1 if a.shift > 0 else 0
        A("    v_readfirstlane_b32 s37, v0")
        A("    s_lshr_b32 s37, s37, 6")
        A(f"    s_bfe_u32 s38, s2, {(1 << 16) | a.sbit}")
        A("    s_mov_b32 s36, s10")
        A(f"    s_cmp_eq_u32 s38, {giver}")
        A("    s_cbranch_scc1 L_giver")
        A(f"    s_cmp_lt_u32 s37, {n}")
        A("    s_cbranch_scc0 L_split")
        A("    s_lshl_b32 s37, s37, 11")
        A(f"    s_sub_u32 s36, {(7 << 21) + ((8192 << a.sbit) if giver else -(8192 << a.sbit)) + 7 * 1024}, s37")
        A("    s_branch L_split")
        A("L_giver:")
        A(f"    s_cmp_ge_u32 s37, {8 - n}")
        A("    s_cselect_b32 s22, s10, s22")
        A("L_split:")
    gdone = [False]
    gmul = set()
    def gunpack():
        if gdone[0]: return
        wait_for("g", 0)
        for c in range(4):
            A(f"    v_lshlrev_b32 v{GF+2*c}, 16, v{G0+c}")
            A(f"    v_and_b32 v{GF+2*c+1}, s23, v{G0+c}")
        gdone[0] = True
    def gm(k):
        tb = T0 + 8 * (k % 4)
        return [f"    v_pk_mul_f32 v[{tb+2*c}:{tb+2*c+1}], v[{tb+2*c}:{tb+2*c+1}], v[{GF+2*c}:{GF+2*c+1}]" for c in range(4)]
    def phase1(k, withg):
        r = k % 4; xb = xr(k); tb = T0 + 8 * r
        A(f"    v_mov_b32 v{P+r}, 0")
        wait_for("x", k)
        for c in range(4):
            A(f"    v_lshlrev_b32 v{tb+2*c}, 16, v{xb+c}")
            A(f"    v_and_b32 v{tb+2*c+1}, s23, v{xb+c}")
        for c in range(4): A(f"    v_pk_mul_f32 v[{Q0+2*c}:{Q0+2*c+1}], v[{tb+2*c}:{tb+2*c+1}], v[{tb+2*c}:{tb+2*c+1}]")
        for c in range(4): A(f"    v_cvt_pk_bf16_f32 v{Q0+2*c}, v{Q0+2*c}, v{Q0+2*c+1}")
        for c in range(4): A(f"    v_dot2c_f32_bf16 v{P+r}, s24, v{Q0+2*c}")
        if withg:
            gunpack()
            for l in gm(k): A(l)
            gmul.add(k)
    def reduce(rows, eager):
        gunpack()
        n = len(rows); p = [P + k % 4 for k in rows]
        fill = []
        for k in rows:
            if k not in gmul: fill += gm(k)
        def pad(m):
            got = 0
            while got < m and fill:
                A(fill.pop(0)); got += 1
            if got < m: A(f"    s_nop {m-got-1}")
        pad(3)
        v = p[0]
        if n == 4:
            A(f"    v_permlane32_swap_b32 v{p[0]}, v{p[1]}")
            A(f"    v_permlane32_swap_b32 v{p[2]}, v{p[3]}")
            A(f"    v_add_f32 v{p[0]}, v{p[0]}, v{p[1]}")
            A(f"    v_add_f32 v{p[2]}, v{p[2]}, v{p[3]}")
            pad(2)
            A(f"    v_permlane16_swap_b32 v{p[0]}, v{p[2]}")
            A(f"    v_add_f32 v{p[0]}, v{p[0]}, v{p[2]}")
            lanes = [0, 32, 16, 48]
            pad(2)
        elif n == 2:
            A(f"    v_permlane32_swap_b32 v{p[0]}, v{p[1]}")
            A(f"    v_add_f32 v{p[0]}, v{p[0]}, v{p[1]}")
            lanes = [16, 48]
            pad(2)
        else:
            lanes = [63]
        steps = ["row_ror:8 row_mask:0xf", "row_ror:4 row_mask:0xf", "row_ror:2 row_mask:0xf", "row_ror:1 row_mask:0xf"]
        if n <= 2: steps.append("row_bcast:15 row_mask:0xa")
        if n == 1: steps.append("row_bcast:31 row_mask:0xc")
        for i, st in enumerate(steps):
            if i: pad(2)
            A(f"    v_add_f32_dpp v{v}, v{v}, v{v} {st} bank_mask:0xf")
        A(f"    v_cvt_pk_bf16_f32 v{v}, 0, v{v}")
        A(f"    v_fma_f32 v{v}, v{v}, s3, v3")
        A(f"    v_cvt_pk_bf16_f32 v{v}, 0, v{v}")
        A(f"    v_sqrt_f32 v{v}, v{v}")
        pad(1)
        A(f"    v_cvt_pk_bf16_f32 v{v}, 0, v{v}                 ; rms")
        A(f"    v_rcp_f32 v{v}, v{v}")
        pad(1)
        for i, k in enumerate(rows): A(f"    v_readlane_b32 s{26+2*i}, v{v}, {lanes[i]}")
        if n < 3 or fill: pad(max(0, 3 - n)) if n < 3 else None
        while fill: A(fill.pop(0))
        for i, k in enumerate(rows):
            xb = xr(k); tb = T0 + 8 * (k % 4)
            for c in range(4):
                A(f"    v_pk_mul_f32 v[{tb+2*c}:{tb+2*c+1}], v[{tb+2*c}:{tb+2*c+1}], s[{26+2*i}:{27+2*i}] op_sel_hi:[1,0]")
            for c in range(4): A(f"    v_cvt_pk_bf16_f32 v{xb+c}, v{tb+2*c}, v{tb+2*c+1}")
            if eager: store(k)
    def run(script):
        for t in script.split():
            arg = t[1:]
            if t[0] == "w": wait_for("x", int(arg))
            elif t[0] == "l": xload(int(arg))
            elif t[0] == "s":
                for ch in arg: store(int(ch))
            elif t[0] == "a":
                for ch in arg: phase1(int(ch), False)
            elif t[0] == "A":
                for ch in arg: phase1(int(ch), True)
            elif t[0] == "r": reduce([int(c) for c in arg], False)
            elif t[0] == "R": reduce([int(c) for c in arg], True)
            elif t[0] == "p": A(f"    s_setprio {arg}")
            elif t[0] == "b": A("    s_barrier")
            elif t[0] == "n": A(f"    s_nop {arg}")
            elif t[0] == "x":
                A("    s_cmp_eq_u32 s36, s10")
                A("    s_cbranch_scc1 L_done")
    def check():
        assert sorted(k for (t, k) in ops if t == "x") == list(range(9 if a.shift else 8))
        assert sorted(k for (t, k) in ops if t == "s") == list(range(9 if a.shift else 8))
    run(a.script)
    if a.even:
        A("    s_getreg_b32 s25, hwreg(HW_REG_XCC_ID, 0, 1)")
        A("    s_cmp_lg_u32 s25, 0")
        A("    s_cbranch_scc1 L_odd")
        saved = (list(ops), waited[0], set(gmul))
        run(a.even); check()
        A("    s_endpgm")
        A("L_odd:")
        ops[:] = saved[0]; waited[0] = saved[1]; gmul.clear(); gmul.update(saved[2])
        run(a.odd)
    check()
    A("L_done:")
    A("    s_endpgm")
    if a.pf: A(f"    .fill ({NAME} + {128 + 4096} - . + 3) / 4, 4, 0xbf810000 ; never executed: keeps the prefetch window inside .text")
    A(f""".section .rodata,"a"
.p2align 6
.amdhsa_kernel {NAME}
  .amdhsa_next_free_vgpr {96 if a.shift else 92}
  .amdhsa_next_free_sgpr {40 if a.shift else 36}
  .amdhsa_accum_offset {96 if a.shift else 92}
  .amdhsa_group_segment_fixed_size 0
  .amdhsa_kernarg_size 40
  .amdhsa_user_sgpr_count 2
  .amdhsa_user_sgpr_kernarg_segment_ptr 1
  .amdhsa_system_sgpr_workgroup_id_x 1
  .amdhsa_float_denorm_mode_32 3
.end_amdhsa_kernel
""")
    return "\n".join(L)

if __name__ == "__main__":
    ap = argparse.ArgumentParser()
    ap.add_argument("--align", type=int, default=1)
    ap.add_argument("--pf", type=int, default=1)
    ap.add_argument("--gpos", type=int, default=0)
    ap.add_argument("--gap", type=int, default=0)
    ap.add_argument("--d", type=int, default=4)
    ap.add_argument("--shift", type=int, default=0)
    ap.add_argument("--sbit", type=int, default=0)
    ap.add_argument("--even", default="")
    ap.add_argument("--odd", default="")
    ap.add_argument("--map", default="")
    ap.add_argument("--script", default="w0 l4 w1 l5 w2 l6 w3 l7 a0123 r0123 w6 s0123 a4567 R4567")
    ap.add_argument("-o", default="-")
    a = ap.parse_args()
    s = gen(a)
    if a.o == "-": print(s)
    else: open(a.o, "w").write(s)
```
